```python
import torch

def _softmax(x, axis=-1):
    return torch.softmax(x, dim=axis)
def _gelu(x):
    return torch.nn.functional.gelu(x, approximate="tanh")
def _silu(x):
    return torch.nn.functional.silu(x)
def _sigmoid(x):
    return torch.sigmoid(x)
def _layernorm(x, axis=-1, eps=1e-5):
    m = x.mean(dim=axis, keepdim=True)
    v = x.var(dim=axis, keepdim=True, unbiased=False)
    return (x - m) / torch.sqrt(v + eps)
def _scatter_add(tgt, idx, src, axis=0):
    return tgt.clone().index_add_(axis, idx, src)
def _segment_sum(src, seg, n):
    out = torch.zeros((n,) + src.shape[1:], dtype=src.dtype)
    return out.index_add_(0, seg, src)
def _pad(x, pw):
    flat = tuple(v for pair in reversed(pw) for v in pair)
    return torch.nn.functional.pad(x, flat)

kernel_name = 'interleave_layers__gqa_block_cached__dense_activation_silu__decode'

def setup_inputs():

    _w = (lambda a: (lambda t: t.to(torch.bfloat16) if t.is_floating_point() else t)(torch.as_tensor(a)))
    def _A_setup():
        B, Sq, D = 8, 1, 512
        Hq, Hkv, Sk, Dh = 32, 8, 8192, 128
        assert Hq % Hkv == 0, (Hq, Hkv)
        return {
            "x": _w((lambda *s: torch.randn(*s, dtype=torch.bfloat16) * 0.1)(B, Sq, D)),
            "k_cache": _w((lambda *s: torch.randn(*s, dtype=torch.bfloat16) * 0.8)(B, Hkv, Sk, Dh)),
            "v_cache": _w((lambda *s: torch.randn(*s, dtype=torch.bfloat16) * 3.2)(B, Hkv, Sk, Dh)),
            "wq": _w((lambda *s: torch.randn(*s, dtype=torch.bfloat16) * 0.8)(D, Hq * Dh) * (D ** -0.5)),
            "wo": _w((lambda *s: torch.randn(*s, dtype=torch.bfloat16) * 3.2)(Hq * Dh, D) * ((Hq * Dh) ** -0.5)),
        }
    _A_in = _A_setup()

    def _B_setup():
        B, S, D, F = 8, 1, 512, 1792
        return {
            "x": _w((lambda *s: torch.randn(*s, dtype=torch.bfloat16) * 0.1)(B, S, D)),
            "w1": _w((lambda *s: torch.randn(*s, dtype=torch.bfloat16) * 1.6)(D, F) * (D ** -0.5)),
            "w2": _w((lambda *s: torch.randn(*s, dtype=torch.bfloat16) * 0.4)(F, D) * (F ** -0.5)),
        }
    _B_in = _B_setup()

    return {
        "A_x": _A_in["x"],
        "A_k_cache": _A_in["k_cache"],
        "A_v_cache": _A_in["v_cache"],
        "A_wq": _A_in["wq"],
        "A_wo": _A_in["wo"],
        "B_x": _B_in["x"],
        "B_w1": _B_in["w1"],
        "B_w2": _B_in["w2"],
    }

def reference(A_x, A_k_cache, A_v_cache, A_wq, A_wo, B_x, B_w1, B_w2):
    def _A_ref(x, k_cache, v_cache, wq, wo):
        B, Sq, D = x.shape
        Hq, Dh = 32, 128
        Hkv = k_cache.shape[1]
        rep = Hq // Hkv
        q = (lambda x, *d: x.permute(*d))((x @ wq).reshape(B, Sq, Hq, Dh), 0, 2, 1, 3)
        k = (lambda x, n, axis: torch.repeat_interleave(x, n, dim=axis))(k_cache, rep, axis=1)
        v = (lambda x, n, axis: torch.repeat_interleave(x, n, dim=axis))(v_cache, rep, axis=1)
        scores = torch.einsum("bhqd,bhkd->bhqk", q, k) * (Dh ** -0.5)
        p = _softmax(scores, axis=-1)
        o = torch.einsum("bhqk,bhkd->bhqd", p, v)
        return (lambda x, *d: x.permute(*d))(o, 0, 2, 1, 3).reshape(B, Sq, Hq * Dh) @ wo

    def _B_ref(x, w1, w2):
        h = torch.einsum("bsd,df->bsf", x, w1)
        h = _silu(h)
        out = torch.einsum("bsf,fd->bsd", h, w2)
        return out

    x = A_x
    x = x + _A_ref(_layernorm(x, axis=-1), A_k_cache, A_v_cache, A_wq, A_wo)
    x = x + _B_ref(_layernorm(x, axis=-1), B_w1, B_w2)
    x = x + _A_ref(_layernorm(x, axis=-1), A_k_cache, A_v_cache, A_wq, A_wo)
    x = x + _B_ref(_layernorm(x, axis=-1), B_w1, B_w2)
    return x
```

```python
class Reg:
    def __init__(s, k, i, n=1): s.k, s.i, s.n = k, i, n
    def __str__(s): return f'{s.k}{s.i}' if s.n == 1 else f'{s.k}[{s.i}:{s.i+s.n-1}]'
    def __getitem__(s, x):
        if isinstance(x, slice):
            a = x.start or 0; b = s.n if x.stop is None else x.stop
            assert 0 <= a < b <= s.n
            return Reg(s.k, s.i + a, b - a)
        assert 0 <= x < s.n
        return Reg(s.k, s.i + x, 1)
    def keys(s): return [(s.k, s.i + t) for t in range(s.n)]
class Neg:
    def __init__(s, r): s.r = r
    def __str__(s): return '-' + str(s.r)
def V(i, n=1): return Reg('v', i, n)
def A(i, n=1): return Reg('a', i, n)
def S(i, n=1): return Reg('s', i, n)
TRANS = ('v_exp_f32', 'v_log_f32', 'v_rcp_f32', 'v_rsq_f32', 'v_sqrt_f32')
def keys_of(o):
    if isinstance(o, Neg): o = o.r
    if isinstance(o, Reg): return o.keys()
    if o == 'vcc': return [('vcc', 0)]
    if o == 'm0': return [('m0', 0)]
    return []
def fmt(o):
    if isinstance(o, int):
        return str(o) if -16 <= o <= 64 else hex(o & 0xffffffff)
    return str(o)

class Op:
    def __init__(s, scope): s.scope = scope; s.done = False

class Em:
    def __init__(s):
        s.lines = []; s.clk = 0; s.rec = {}
        s.snaps = {}; s.vm = []; s.lg = []; s.scopes = [0]; s.nscope = 0; s.nlabel = 0
        s.ninstr = 0
    def raw(s, t): s.lines.append(t)
    def comment(s, t): s.lines.append('; ' + t)
    def _emit(s, t, states=1): s.lines.append('  ' + t); s.clk += states; s.ninstr += 1
    def nop(s, n):
        while n > 0:
            k = min(n, 16); s._emit(f's_nop {k-1}', k); n -= k
    def _need(s, typ, keys, ws):
        r = 0
        for k in keys:
            c = s.rec.get((typ, k))
            if c is not None: r = max(r, ws - (s.clk - c - 1))
        return r
    def _mark(s, typ, keys):
        for k in keys: s.rec[(typ, k)] = s.clk
    def _clear_writes(s, keys):
        for k in keys:
            for t in ('valu', 'trans', 'xdl', 'sgemm', 'xdlD'): s.rec.pop((t, k), None)
    def label(s, name):
        for (sclk, srec) in s.snaps.pop(name, []):
            for k, c in srec.items():
                if k[0] == 'xdlD': continue
                c2 = s.clk - (sclk - c)
                if k not in s.rec or s.rec[k] < c2: s.rec[k] = c2
        for k in [k for k in s.rec if k[0] == 'xdlD']: del s.rec[k]
        s.lines.append(name + ':')
    def newlabel(s, p='L'):
        s.nlabel += 1; return f'{p}_{s.nlabel}'
    def branch(s, op, name, back=False):
        if back: s.nop(12)
        s._emit(f'{op} {name}')
        if not back: s.snaps.setdefault(name, []).append((s.clk, dict(s.rec)))
    def I(s, op, *ops, mods=''):
        need = 0; post = []
        txt = op + ' ' + ', '.join(fmt(o) for o in ops) + ((' ' + mods) if mods else '')
        ret = None
        if op.startswith('v_mfma'):
            D, Aa, Bb, C = ops
            sg = op.endswith('_f32') and 'x4_f32' in op
            ab = keys_of(Aa) + keys_of(Bb); c = keys_of(C); d = keys_of(D)
            need = max(need, s._need('valu', ab + c, 2), s._need('trans', ab + c, 2))
            need = max(need, s._need('xdl', ab, 8), s._need('sgemm', ab, 10))
            exact = (not sg) and isinstance(C, Reg) and all(s.rec.get(('xdlD', k)) == (C.k, C.i, C.n) for k in c)
            if not exact: need = max(need, s._need('xdl', c, 6))
            if sg: need = max(need, s._need('sgemm', c, 8))
            if not exact: need = max(need, s._need('xdl', d, 6), s._need('sgemm', d, 8))
            need = max(need, s._need('wst', d, 2))
            s.nop(need)
            s._clear_writes(d)
            s._mark('sgemm' if sg else 'xdl', d)
            if not sg:
                for k in d: s.rec[('xdlD', k)] = (D.k, D.i, D.n)
                s._mark('xdlC', c)
            s._emit(txt); return
        if op.startswith('v_'):
            base = op.replace('_dpp', '').replace('_e64', '').replace('_e32', '')
            if 'swap' in op: wr = keys_of(ops[0]) + keys_of(ops[1]); rd = list(wr)
            elif base.startswith('v_cmp') or base in ('v_readfirstlane_b32', 'v_readlane_b32'):
                wr = keys_of(ops[0]); rd = sum((keys_of(o) for o in ops[1:]), [])
            else:
                wr = keys_of(ops[0]); rd = sum((keys_of(o) for o in ops[1:]), [])
                if base.startswith('v_fmac') or '_dpp' in op: rd += wr
            vr = [k for k in rd if k[0] in 'va' and k[0] != 'vcc']; sr = [k for k in rd if k[0] in ('s', 'vcc')]
            vw = [k for k in wr if k[0] in ('v', 'a')]; sw = [k for k in wr if k[0] in ('s', 'vcc')]
            need = max(need, s._need('xdl', vr + vw, 8), s._need('sgemm', vr + vw, 10))
            need = max(need, s._need('xdlC', vw, 3), s._need('wst', vw, 2))
            need = max(need, s._need('valu', sr, 2))
            if base not in TRANS: need = max(need, s._need('trans', vr, 1))
            if '_dpp' in op: need = max(need, s._need('valu', keys_of(ops[1]), 2), s._need('trans', keys_of(ops[1]), 2))
            if 'swap' in op: need = max(need, s._need('valu', vr, 2), s._need('trans', vr, 2))
            if base in ('v_readfirstlane_b32', 'v_readlane_b32'): need = max(need, s._need('valu', vr, 1), s._need('trans', vr, 1))
            s.nop(need)
            s._clear_writes(wr)
            s._mark('trans' if base in TRANS else 'valu', wr)
            s._emit(txt); return
        if op.startswith('buffer_') or op.startswith('global_'):
            lds = ' lds' in (' ' + mods)
            isload = '_load' in op
            allk = sum((keys_of(o) for o in ops), [])
            vk = [k for k in allk if k[0] in ('v', 'a')]; sk = [k for k in allk if k[0] == 's']
            need = max(s._need('xdl', vk, 8), s._need('sgemm', vk, 10), s._need('valu', sk, 5))
            if lds: need = max(need, s._need('salu', [('m0', 0)], 1))
            if isload and not lds: need = max(need, s._need('wst', keys_of(ops[0]), 1), s._need('xdlC', keys_of(ops[0]), 3))
            s.nop(need)
            if isload and not lds: s._clear_writes(keys_of(ops[0]))
            if not isload and ('x4' in op or 'x3' in op):
                s._mark('wst', keys_of(ops[0] if op.startswith('buffer_') else ops[1]))
            s._emit(txt)
            o = Op(s.scopes[-1]); s.vm.append(o); return o
        if op.startswith('ds_'):
            allk = sum((keys_of(o) for o in ops), [])
            need = max(s._need('xdl', allk, 8), s._need('sgemm', allk, 10))
            if 'read' in op: need = max(need, s._need('wst', keys_of(ops[0]), 1), s._need('xdlC', keys_of(ops[0]), 3))
            s.nop(need)
            if 'read' in op: s._clear_writes(keys_of(ops[0]))
            s._emit(txt)
            o = Op(s.scopes[-1]); s.lg.append(o); return o
        if ops and ops[0] == 'm0': s._mark('salu', [('m0', 0)])
        elif ops and isinstance(ops[0], Reg) and ops[0].k == 's' and not op.startswith('s_cmp'):
            s._clear_writes(keys_of(ops[0]))
        s._emit(txt)
    def _cnt(s, q, o, mx):
        idx = q.index(o)
        n = sum(1 for x in q[idx+1:] if x.scope in s.scopes)
        return min(n, mx), idx
    def wait_vm(s, o):
        if o is None or o.done: return
        n, idx = s._cnt(s.vm, o, 63)
        s._emit(f's_waitcnt vmcnt({n})')
        if len(s.scopes) == 1:
            for x in s.vm[:idx+1]: x.done = True
            del s.vm[:idx+1]
    def wait_vm0(s):
        s._emit('s_waitcnt vmcnt(0)')
        if len(s.scopes) == 1:
            for x in s.vm: x.done = True
            s.vm = []
    def wait_lg(s, o):
        if o is None or o.done: return
        n, idx = s._cnt(s.lg, o, 15)
        s._emit(f's_waitcnt lgkmcnt({n})')
        for x in s.lg[:idx+1]:
            if len(s.scopes) == 1 or x.scope == s.scopes[-1]: x.done = True
        s.lg = [x for x in s.lg if not x.done]
    def wait_lg0(s):
        s._emit('s_waitcnt lgkmcnt(0)')
        for x in s.lg:
            if len(s.scopes) == 1 or x.scope == s.scopes[-1]: x.done = True
        s.lg = [x for x in s.lg if not x.done]
    def push_scope(s):
        s.nscope += 1; s.scopes.append(s.nscope)
    def pop_scope(s): s.scopes.pop()

class QList:
    def __init__(s, qs): s.qs = qs; s.n = 4 * len(qs)
    def __getitem__(s, x):
        if isinstance(x, slice):
            a = x.start or 0; b = s.n if x.stop is None else x.stop
            assert a // 4 == (b - 1) // 4, 'slice crosses quad'
            return s.qs[a // 4][a % 4: a % 4 + (b - a)]
        return s.qs[x // 4][x % 4]

class Alloc:
    def __init__(s, kind, lo, hi):
        s.kind = kind; s.lo = lo; s.hi = hi; s.used = set(); s.peak = lo
    def get(s, n=1, al=None):
        al = al or (4 if n >= 3 else n)
        i = (s.lo + al - 1) // al * al
        while i + n <= s.hi:
            if all((i + t) not in s.used for t in range(n)):
                s.used.update(range(i, i + n)); s.peak = max(s.peak, i + n); s.maxused = max(getattr(s, 'maxused', 0), len(s.used))
                return Reg(s.kind, i, n)
            i += al
        return None
    def need(s, n=1, al=None):
        if n > 4:
            assert n % 4 == 0
            return QList([s.need(4) for _ in range(n // 4)])
        if n < 3:
            pass
        r = s.get(n, al)
        assert r is not None, f'out of {s.kind} regs (n={n}, used={len(s.used)})'
        return r
    def free(s, *rs):
        for r in rs:
            if isinstance(r, QList):
                s.free(*r.qs); continue
            for t in range(r.n):
                assert (r.i + t) in s.used, f'double free {r}'
                s.used.discard(r.i + t)
```

```python
import sys, math, struct
from asmlib import *
NAME = 'interleave_layers__gqa_block_cached__dense_activation_silu__decode'

def f2u(x): return struct.unpack('<I', struct.pack('<f', x))[0]

WS_H1 = 0x000000; WS_LSE = 0x400000; WS_X = 0x410000; WS_HH = 0x490000; WS_Q2 = 0x4A0000; WS_CLR_END = 0x500000
WS_Q1 = 0x500000; WS_END = 0x510000; WS_STAMP = 0x10000000
L_WQ = 0; L_W1 = 16384; L_WO = 32768; L_W2 = 49152; L_EX = 57344; EXSZ = 9216; L_EXL = L_EX + 2 * EXSZ
L_SCR = L_EXL + 4096
L_RING = L_SCR + 2048
NLSLOT = (163840 - L_RING) // 4096
LDS_TOTAL = L_RING + NLSLOT * 4096
DPPM = 'row_mask:0xf bank_mask:0xf'

class Cfg:
    D = 8
    NT = 144
    use_lds_ring = True
    stamps = False
    o_gWo = 3; o_gL1 = 8; o_gW2 = 4; o_gLq = 7; o_gq2 = 4; o_gWo2 = 9; o_gF = 7
    force_cross = False
    verbose = 0

def gen(cfg):
    e = Em(); I = e.I
    TA = Alloc('v', 1, cfg.NT)
    RA = Alloc('a', 0, 256); RV = Alloc('v', cfg.NT, 256)
    TA0 = TA
    class TW:
        def need(s, n=1, m=False):
            if n > 4: return QList([s.need(4, m) for _ in range(n // 4)])
            r = None
            if m and n == 4: r = RA.get(4) or RV.get(4)
            r = r or TA0.get(n) or RV.get(n)
            assert r is not None, f'out of temps n={n} used={len(TA0.used)}'
            return r
        def free(s, *rs):
            for r in rs:
                if isinstance(r, QList): s.free(*r.qs)
                elif r.k == 'a': RA.free(r)
                elif r.i >= cfg.NT: RV.free(r)
                else: TA0.free(r)
        used = property(lambda s: TA0.used)
        peak = property(lambda s: TA0.peak)
    TA = TW()
    lds_free = list(range(NLSLOT)) if cfg.use_lds_ring else []
    D = cfg.D
    sK, sV, sWS, sWQ, sWO, sW1, sW2, sX, sOUT, sDBG = [S(4 + 4 * t, 4) for t in range(10)]
    sP = S(44, 16); sP2 = S(60, 4); sP3 = S(64, 2)
    sJ, sI_, sW, sLOC, sTO, sKV, sT0, sT1, sC = [S(66 + t) for t in range(9)]
    sH1ld, sLSEld, sLSEst, sXld, sHHld, sHHst, sQld, sQst, sRing, sFld, sXCC = [S(75 + t) for t in range(11)]
    sM = S(86, 2); sST = S(88, 2); sPC = S(90, 2); sSTB = S(92, 2)
    nstamp = [0]
    stamp_names = []

    def cond_wave(k):
        lab = e.newlabel('Lw')
        I('s_cmp_eq_u32', sW, k); e.branch('s_cbranch_scc0', lab); e.push_scope(); return lab
    def cond_end(lab):
        e.pop_scope(); e.label(lab)
    def set_exec(lo, hi):
        I('s_mov_b32', 'exec_lo', lo); I('s_mov_b32', 'exec_hi', hi)
    def full_exec(): I('s_mov_b64', 'exec', -1)
    def stamp(name):
        if not cfg.stamps: return
        k = nstamp[0]; nstamp[0] += 1; stamp_names.append(name)
        lab = cond_wave(0)
        e.raw('  s_memrealtime s[88:89]'); e.wait_lg0()
        t = TA.need(2); a = TA.need(1)
        I('v_mov_b32', t[0], sST[0]); I('v_mov_b32', t[1], sST[1]); I('v_mov_b32', a, 0)
        set_exec(1, 0)
        I('global_store_dwordx2', a, t, sSTB, mods=f'offset:{8*k}')
        full_exec()
        TA.free(t, a)
        cond_end(lab)
    def barrier():
        e.wait_lg0(); I('s_barrier')
    excnt = [0]; exlcnt = [0]
    def next_ex():
        excnt[0] += 1; return (excnt[0] & 1) * EXSZ
    def store2(op, data, voff, soff):
        if cfg.force_cross:
            return I(op, data, voff, sWS, soff, mods='offen sc1')
        l1 = e.newlabel('Ls'); l2 = e.newlabel('Ls')
        I('s_cmp_lg_u32', sLOC, 0); e.branch('s_cbranch_scc1', l1)
        e.push_scope(); I(op, data, voff, sWS, soff, mods='offen sc1'); e.pop_scope()
        e.branch('s_branch', l2); e.label(l1)
        o = I(op, data, voff, sWS, soff, mods='offen')
        e.label(l2)
        return o

    I('s_cmp_ge_u32', S(2), 256); e.branch('s_cbranch_scc1', 'L_end')
    e.raw('  s_load_dwordx16 s[44:59], s[0:1], 0')
    e.raw('  s_load_dwordx4 s[60:63], s[0:1], 64')
    e.raw('  s_load_dwordx2 s[64:65], s[0:1], 80')
    vl = TA.need(1); vn = TA.need(1); vg = TA.need(1); t0 = TA.need(1); t1 = TA.need(1); t2 = TA.need(1)
    I('v_lshrrev_b32', t0, 6, V(0)); I('v_and_b32', vl, 63, V(0))
    I('v_readfirstlane_b32', sW, t0)
    I('s_and_b32', sJ, S(2), 7); I('s_lshr_b32', sI_, S(2), 3)
    I('v_and_b32', vn, 15, vl); I('v_lshrrev_b32', vg, 4, vl)
    vK = TA.need(1); vV = TA.need(1); vL16 = TA.need(1); vG16 = TA.need(1)
    I('v_lshlrev_b32', vL16, 4, vl); I('v_lshlrev_b32', vG16, 4, vg)
    I('s_lshl_b32', sT0, sJ, 21); I('s_lshl_b32', sT1, sI_, 16); I('s_add_u32', sT0, sT0, sT1)
    I('s_lshl_b32', sT1, sW, 14); I('s_add_u32', sT0, sT0, sT1)
    I('v_add_u32', vV, sT0, vL16)
    vQo = TA.need(1)
    I('v_lshrrev_b32', t0, 2, vn); I('v_lshlrev_b32', t0, 8, t0)
    I('v_and_b32', t1, 3, vn); I('v_lshlrev_b32', t1, 4, t1)
    I('v_lshl_add_u32', vQo, vg, 6, t0); I('v_add_u32', vQo, vQo, t1)
    I('v_add_u32', vK, sT0, vQo)
    e.raw('  s_waitcnt lgkmcnt(0)')
    def srd(d, p, size):
        I('s_mov_b32', d[0], p[0]); I('s_mov_b32', d[1], p[1]); I('s_mov_b32', d[2], size); I('s_mov_b32', d[3], 0x20000)
    srd(sK, sP[2:4], 0x8000000); srd(sV, sP[4:6], 0x8000000)
    srd(sX, sP[0:2], 8192); srd(sWQ, sP[6:8], 512 * 4096 * 2)
    XA = TA.need(16)
    I('v_and_b32', t0, 7, vn); I('v_lshlrev_b32', t0, 10, t0); I('v_add_u32', t0, t0, vG16)
    I('s_lshl_b32', sT1, sW, 8)
    xa_ops = [I('buffer_load_dwordx4', XA[4*kk:4*kk+4], t0, sX, sT1, mods=f'offen offset:{64*kk}') for kk in range(4)]
    vrow = TA.need(1); vhalf = TA.need(1)
    I('v_lshrrev_b32', vrow, 1, vl); I('v_and_b32', vhalf, 1, vl); I('v_lshlrev_b32', vhalf, 4, vhalf)
    def wdma(srd_, rowbytes, row0_s, colb_s, ldsbase, tiles):
        I('s_mul_i32', sT0, row0_s, rowbytes); I('s_add_u32', sT0, sT0, colb_s)
        I('v_mov_b32', t1, rowbytes); I('v_mul_u32_u24', t1, vrow, t1); I('v_add_u32', t1, t1, vhalf)
        ops = []
        for t in range(tiles):
            I('s_add_u32', 'm0', ldsbase, t * 1024)
            ops.append(I('buffer_load_dwordx4', t1, srd_, sT0, mods='offen lds'))
            if t + 1 < tiles: I('s_add_u32', sT0, sT0, 32 * rowbytes)
        return ops
    sA, sB, sL = S(94), S(95), S(96)
    I('s_lshl_b32', sA, sW, 7)
    I('s_lshl_b32', sB, sJ, 10); I('s_lshl_b32', sT1, sI_, 5); I('s_add_u32', sB, sB, sT1)
    I('s_lshl_b32', sL, sW, 12)
    wq_ops = wdma(sWQ, 8192, sA, sB, sL, 4)

    slots = {}; kvop = {}; issued = [0]
    def kv_issue(p):
        b, r = divmod(p, 32); isV = r >= 16; t = r % 16
        sl = RA.get(4) or RV.get(4)
        if sl is None:
            assert lds_free, f'ring full at load {p}'
            sl = ('lds', lds_free.pop(0))
        slots[p] = sl
        if t % 4 == 0: I('s_mov_b32', sKV, b * (16 << 20) + (t // 4) * 4096)
        off = (t % 4) * 1024
        if isinstance(sl, tuple):
            I('s_add_u32', 'm0', sRing, sl[1] * 1024 - off)
            kvop[p] = I('buffer_load_dwordx4', vV if isV else vK, sV if isV else sK, sKV, mods=f'offen offset:{off} nt lds')
        else:
            kvop[p] = I('buffer_load_dwordx4', sl, vV if isV else vK, sV if isV else sK, sKV, mods=f'offen offset:{off} nt')
    def kv_free(p):
        sl = slots.pop(p)
        if isinstance(sl, tuple): lds_free.append(sl[1])
        elif sl.k == 'a': RA.free(sl)
        else: RV.free(sl)
    for p in range(D): kv_issue(p)
    issued[0] = D

    srd(sWS, sP3, 0x20000000); srd(sWO, sP[8:10], 4096 * 512 * 2); srd(sW1, sP[12:14], 512 * 1792 * 2); srd(sW2, sP[14:16], 1792 * 512 * 2)
    srd(sOUT, sP2[0:2], 8192); srd(sDBG, sP2[2:4], 256)
    I('s_mov_b32', sTO, 200000); I('s_mov_b32', sC, f2u(math.log2(math.e) / math.sqrt(128.0))); I('s_mov_b32', sLOC, 0)
    if cfg.stamps:
        I('s_add_u32', sSTB[0], sP3[0], WS_STAMP); I('s_addc_u32', sSTB[1], sP3[1], 0)
        I('s_mul_i32', sT0, S(2), 8 * cfg.nstamps); I('s_add_u32', sSTB[0], sSTB[0], sT0); I('s_addc_u32', sSTB[1], sSTB[1], 0)
    stamp('start')
    lab = e.newlabel('Lr'); I('s_cmp_lt_u32', sI_, 14); e.branch('s_cbranch_scc0', lab); e.push_scope()
    I('s_mul_i32', sB, sJ, 448); I('s_lshl_b32', sT1, sI_, 5); I('s_add_u32', sB, sB, sT1)
    I('s_add_u32', sL, sL, L_W1)
    w1_ops = wdma(sW1, 3584, sA, sB, sL, 4)
    e.pop_scope(); e.label(lab)
    I('s_lshl_b32', sA, sJ, 9); I('s_lshl_b32', sT1, sW, 7); I('s_add_u32', sA, sA, sT1)
    I('s_lshl_b32', sB, sI_, 5)
    I('s_lshl_b32', sL, sW, 12); I('s_add_u32', sL, sL, L_WO)
    wo_ops = wdma(sWO, 1024, sA, sB, sL, 4)
    I('s_mul_i32', sA, sJ, 224); I('s_lshl_b32', sT1, sW, 6); I('s_add_u32', sA, sA, sT1)
    I('s_lshl_b32', sL, sW, 11); I('s_add_u32', sL, sL, L_W2)
    w2_ops = wdma(sW2, 1024, sA, sB, sL, 2)
    ST = [TA.need(4), TA.need(4)]
    I('v_lshrrev_b32', t0, 1, vG16)
    I('s_lshl_b32', sT0, sW, 10); I('s_add_u32', sT0, sT0, sB)
    st_ops = [I('buffer_load_dwordx2', ST[0][0:2], t0, sX, sT0, mods='offen')]
    I('s_add_u32', sT0, sT0, 4096)
    st_ops.append(I('buffer_load_dwordx2', ST[1][0:2], t0, sX, sT0, mods='offen'))
    e.raw('  s_getpc_b64 s[90:91]'); e.raw('L_pc:')
    e.raw(f'  s_sub_u32 s90, s90, L_pc-{NAME}_kernel'); e.raw('  s_subb_u32 s91, s91, 0')
    dummy = TA.need(4)
    I('s_lshl_b32', sT0, sI_, 2); I('s_add_u32', sT0, sT0, sW); I('s_lshl_b32', sT0, sT0, 10)
    I('v_add_u32', t0, sT0, vL16)
    e.raw(f'  v_min_u32 {t0}, L_codeend-{NAME}_kernel-16, {t0}'); e.clk += 1
    I('global_load_dwordx4', dummy, t0, sPC)
    ones = TA.need(4)
    for r in range(4): I('v_mov_b32', ones[r], -1)
    I('s_mul_i32', sT0, S(2), 20480); I('s_mul_i32', sT1, sW, 5120); I('s_add_u32', sT0, sT0, sT1)
    for t in range(4): I('buffer_store_dwordx4', ones, vL16, sWS, sT0, mods=f'offen offset:{1024*t} sc1')
    I('s_add_u32', sT0, sT0, 4096)
    I('buffer_store_dwordx4', ones, vL16, sWS, sT0, mods='offen sc1')
    vSel = TA.need(4); vOneF = TA.need(1); vOnes = TA.need(4)
    I('v_and_b32', t0, 3, vn)
    for idx, (ea, eb, lo, hi) in enumerate([(0, 1, 0x0c0c0100, 0x01000c0c), (0, 1, 0x0c0c0302, 0x03020c0c), (2, 3, 0x0c0c0100, 0x01000c0c), (2, 3, 0x0c0c0302, 0x03020c0c)]):
        I('v_mov_b32', vSel[idx], 0x0c0c0c0c)
        I('v_mov_b32', t1, lo); I('v_cmp_eq_u32', 'vcc', ea, t0); I('v_cndmask_b32', vSel[idx], vSel[idx], t1, 'vcc')
        I('v_mov_b32', t1, hi); I('v_cmp_eq_u32', 'vcc', eb, t0); I('v_cndmask_b32', vSel[idx], vSel[idx], t1, 'vcc')
    I('v_mov_b32', vOneF, '1.0')
    for r in range(4): I('v_mov_b32', vOnes[r], 0x3f803f80)
    vTrS = TA.need(1); vTrO = TA.need(1); vExA = TA.need(1); vExR = TA.need(1)
    vOW = TA.need(1); vOR = TA.need(1); vSW = TA.need(1); vSR = TA.need(1)
    vH1st = TA.need(1); vXst = TA.need(1); vN2 = TA.need(1); vRing = TA.need(1); vTr0 = TA.need(1)
    rho = t0; cc = t1
    I('v_lshrrev_b32', rho, 2, vn); I('v_and_b32', cc, 3, vn)
    I('s_lshl_b32', sT0, sW, 12)
    I('v_lshl_add_u32', t2, vg, 3, rho); I('v_lshlrev_b32', t2, 5, t2); I('v_lshl_add_u32', vTr0, cc, 3, t2)
    I('v_add_u32', vTrS, sT0, vTr0)
    I('v_lshl_add_u32', t2, rho, 3, vg); I('v_lshlrev_b32', t2, 5, t2); I('v_lshl_add_u32', vTrO, cc, 3, t2)
    I('s_add_u32', sT1, sT0, L_WO); I('v_add_u32', vTrO, sT1, vTrO)
    I('v_add_u32', vExR, L_EX, vL16)
    I('s_lshl_b32', sT1, sW, 2); I('v_add_u32', vExA, sT1, vExR)
    I('s_mul_i32', sT1, sW, 2112); I('v_add_u32', vOW, sT1, vExR)
    I('v_lshl_add_u32', t2, vg, 4, rho); I('s_lshl_b32', sT1, sW, 2); I('v_add_u32', t2, sT1, t2); I('v_lshlrev_b32', t2, 4, t2)
    I('v_mul_u32_u24', vOR, 2112, cc); I('v_add_u32', vOR, vOR, t2); I('v_add_u32', vOR, L_EX, vOR)
    I('s_lshl_b32', sT1, sW, 5); I('s_add_u32', sT1, sT1, L_EX + 8448); I('v_lshlrev_b32', t2, 3, rho); I('v_add_u32', vSW, sT1, t2)
    I('s_lshl_b32', sT1, sW, 3); I('s_add_u32', sT1, sT1, L_EX + 8448); I('v_lshlrev_b32', t2, 5, cc); I('v_add_u32', vSR, sT1, t2)
    I('s_lshl_b32', sH1ld, sJ, 15); I('s_lshl_b32', sT1, sW, 13); I('s_add_u32', sH1ld, sH1ld, sT1)
    I('s_lshr_b32', sT1, sI_, 4); I('s_lshl_b32', sT1, sT1, 12); I('s_add_u32', sT0, sH1ld, sT1)
    I('s_and_b32', sT1, sI_, 15); I('s_lshl_b32', sT1, sT1, 4); I('s_add_u32', sT0, sT0, sT1)
    I('v_lshlrev_b32', t2, 10, vg); I('v_lshl_add_u32', t2, rho, 8, t2); I('v_add_u32', vH1st, sT0, t2)
    I('s_lshl_b32', sT0, sI_, 9); I('s_lshl_b32', sT1, sJ, 5); I('s_add_u32', sT0, sT0, sT1)
    I('v_lshrrev_b32', t2, 1, vg); I('v_lshlrev_b32', t2, 8, t2); I('v_and_b32', t0, 1, vg); I('v_lshl_add_u32', t2, t0, 4, t2)
    I('v_add_u32', vXst, sT0, t2)
    I('v_lshlrev_b32', vN2, 1, vn)
    I('s_mul_i32', sRing, sW, NLSLOT * 1024); I('s_add_u32', sRing, sRing, L_RING); I('v_add_u32', vRing, sRing, vL16)
    I('s_lshl_b32', sT0, sJ, 9); I('s_lshl_b32', sT1, sW, 7); I('s_add_u32', sLSEld, sT0, sT1); I('s_add_u32', sLSEld, sLSEld, WS_LSE)
    I('s_lshl_b32', sT1, sI_, 2); I('s_add_u32', sLSEst, sLSEld, sT1)
    I('s_lshl_b32', sXld, sW, 12); I('s_add_u32', sXld, sXld, WS_X)
    I('s_add_u32', sHHld, sT0, WS_HH); I('s_lshl_b32', sT1, sI_, 5); I('s_add_u32', sHHst, sHHld, sT1)
    I('s_lshl_b32', sQld, sJ, 10); I('s_add_u32', sQst, sQld, sT1)
    I('s_lshr_b32', sFld, sI_, 1); I('s_lshl_b32', sFld, sFld, 10); I('s_add_u32', sFld, sFld, WS_X + 24 * 16384)
    e.raw('  s_getreg_b32 s85, hwreg(HW_REG_XCC_ID)'); e.clk += 1
    I('s_and_b32', sXCC, sXCC, 15)
    csq = TA.need(1); cs1 = TA.need(1)
    TA.free(vrow, vhalf, t0, t1, t2)

    def trfrag(dst, vaddr, off):
        a = I('ds_read_b64_tr_b16', dst[0:2], vaddr, mods=f'offset:{off}')
        b = I('ds_read_b64_tr_b16', dst[2:4], vaddr, mods=f'offset:{off+128}')
        return b
    def rowsum(r):
        for sh in (8, 4, 2, 1): I('v_add_f32_dpp', r, r, r, mods=f'row_ror:{sh} {DPPM}')
    def gred(op, r):
        t = TA.need(1)
        I('v_mov_b32', t, r); I('v_permlane16_swap_b32', r, t); I(op, r, r, t)
        I('v_mov_b32', t, r); I('v_permlane32_swap_b32', r, t); I(op, r, r, t)
        TA.free(t)
    class Gather:
        def __init__(g, loads):
            g.loads = loads; g.last = None
        def issue(g):
            cur = None
            for (op, dst, voff, sb, c) in g.loads:
                hi, lo = c - (c % 4096), c % 4096
                if cur != (sb.i, hi):
                    I('s_add_u32', sT1, sb, hi); cur = (sb.i, hi)
                g.last = I(op, dst, voff, sWS, sT1, mods=f'offen offset:{lo} sc1')
        def regs(g): return [r for l in g.loads for r in [l[1][t] for t in range(l[1].n)]]
        def check(g):
            e.wait_vm(g.last)
            lc = e.newlabel('Lc'); lo = e.newlabel('Lo')
            e.label(lc)
            rs = g.regs(); m = TA.need(1)
            I('v_max_u32', m, rs[0], rs[1]); k = 2
            while k < len(rs):
                if k + 1 < len(rs): I('v_max3_u32', m, m, rs[k], rs[k+1]); k += 2
                else: I('v_max_u32', m, m, rs[k]); k += 1
            I('v_cmp_eq_u32', 'vcc', -1, m); TA.free(m)
            e.branch('s_cbranch_vccz', lo)
            I('s_cmp_eq_u32', sTO, 0); e.branch('s_cbranch_scc1', lo)
            I('s_sub_u32', sTO, sTO, 1); I('s_sleep', 1)
            e.push_scope(); g.issue(); e.wait_vm0(); e.pop_scope()
            e.branch('s_branch', lc, back=True)
            e.label(lo)
    def post_ln(y, st, cs):
        mean = TA.need(1); var = TA.need(1)
        I('v_mul_f32', mean, f2u(1 / 512), st[0]); I('v_mul_f32', var, f2u(1 / 512), st[1])
        I('v_fma_f32', var, Neg(mean), mean, var); I('v_max_f32', var, 0, var); I('v_add_f32', var, f2u(1e-5), var)
        I('v_rsq_f32', var, var)
        I('v_fma_f32', y, Neg(mean), cs, y); I('v_mul_f32', y, y, var)
        TA.free(mean, var)
    def pack_pairs(y):
        t = TA.need(1)
        I('v_mov_b32_dpp', t, y, mods=f'quad_perm:[1,1,3,3] {DPPM}')
        I('v_cvt_pk_bf16_f32', y, y, t); TA.free(t)

    def ev_S2():
        e.comment('S2: q1')
        e.wait_vm(wq_ops[-1])
        B = TA.need(16, True); B1 = TA.need(16, True)
        for kk in range(4): lastb = trfrag(B[4*kk:4*kk+4], vTrS, L_WQ + kk * 1024)
        I('v_cmp_lt_u32', 'vcc', 7, vn)
        for r in range(16): I('v_cndmask_b32', XA[r], XA[r], vOnes[0], 'vcc')
        DW = TA.need(4); D1 = TA.need(4); DG = TA.need(4); DC = TA.need(4)
        for kk in range(4): I('v_mfma_f32_16x16x32_bf16', DG, XA[4*kk:4*kk+4], XA[4*kk:4*kk+4], DG if kk else 0)
        for kk in range(4): I('v_mfma_f32_16x16x32_bf16', D1, XA[4*kk:4*kk+4], vOnes, D1 if kk else 0)
        e.wait_lg(lastb)
        for kk in range(4): I('v_mfma_f32_16x16x32_bf16', DW, XA[4*kk:4*kk+4], B[4*kk:4*kk+4], DW if kk else 0)
        e.wait_vm(st_ops[-1])
        for kk in range(4): lastb = trfrag(B1[4*kk:4*kk+4], vTrS, L_W1 + kk * 1024)
        d = TA.need(1)
        I('v_lshlrev_b32', d, 2, vg); I('v_sub_u32', d, vn, d)
        for r in range(4):
            I('v_cmp_eq_u32', 'vcc', r, d); I('v_cndmask_b32', DG[r], 0, DG[r], 'vcc')
        for r in range(4): rowsum(DG[r])
        TA.free(d)
        e.wait_lg(lastb)
        for kk in range(4): I('v_mfma_f32_16x16x32_bf16', DC, vOnes, B1[4*kk:4*kk+4], DC if kk else 0)
        I('s_cmp_eq_u32', sJ, 0); I('s_cselect_b32', sT0, -65536, 0)
        for s_ in ST:
            I('v_and_b32', s_[3], sT0, s_[1]); I('v_lshlrev_b32', s_[2], 16, s_[1]); I('v_and_b32', s_[2], sT0, s_[2])
            I('v_and_b32', s_[1], sT0, s_[0]); I('v_lshlrev_b32', s_[0], 16, s_[0]); I('v_and_b32', s_[0], sT0, s_[0])
        a = TA.need(1)
        I('s_lshl_b32', sT0, sW, 12); I('v_add_u32', a, sT0, vExR)
        for q, R in enumerate((DW, D1, DG, DC)): I('ds_write_b128', a, R, mods=f'offset:{q*1024}')
        barrier()
        TA.free(B, B1, DW, D1, DG, DC, XA)
        R = TA.need(20); a2 = TA.need(1)
        I('v_lshlrev_b32', a2, 4, vn); I('v_add_u32', a2, L_EX + 512, a2)
        for w in range(4):
            for q in range(3): I('ds_read_b32', R[q*4+w], vExA, mods=f'offset:{w*4096+q*1024}')
            I('ds_read_b32', R[12+w], a2, mods=f'offset:{w*4096}')
            I('ds_read_b32', R[16+w], a2, mods=f'offset:{w*4096+3072}')
        e.wait_lg0()
        for q in range(5):
            I('v_add_f32', R[q*4], R[q*4], R[q*4+1]); I('v_add_f32', R[q*4+2], R[q*4+2], R[q*4+3])
            dst = csq if q == 3 else cs1 if q == 4 else R[q*4] if q != 2 else R[5]
            I('v_add_f32', dst, R[q*4], R[q*4+2])
        post_ln(R[0], R[4:6], csq)
        pack_pairs(R[0])
        I('v_lshlrev_b32', a, 15, vg); I('v_add_u32', a, a, vN2)
        I('s_lshl_b32', sT0, sW, 13); I('s_add_u32', sT0, sT0, sQst); I('s_add_u32', sT0, sT0, WS_Q1)
        set_exec(0x55555555, 0)
        st = I('buffer_store_dword', R[0], a, sWS, sT0, mods='offen sc1')
        full_exec()
        TA.free(R, a, a2, dummy, ones)
        ev_S2.st = st
        stamp('S2')
    def ev_S3():
        e.comment('S3: arrive')
        e.wait_vm(ev_S2.st); barrier()
        lab = cond_wave(0)
        a = TA.need(1); d = TA.need(1)
        I('s_mul_i32', sT0, sXCC, sXCC); I('s_lshl_b32', sT0, sT0, 16); I('s_lshl_b32', sT1, sXCC, 8); I('s_add_u32', sT0, sT0, sT1); I('s_add_u32', sT0, sT0, 1)
        I('v_mov_b32', d, sT0)
        I('s_and_b32', sT0, sJ, 3); I('s_lshl_b32', sT0, sT0, 2); I('s_lshr_b32', sT1, sJ, 2); I('s_lshl_b32', sT1, sT1, 7); I('s_add_u32', sT0, sT0, sT1)
        I('v_mov_b32', a, sT0)
        set_exec(1, 0)
        I('buffer_atomic_add', d, a, sDBG, 0, mods='offen sc1')
        full_exec()
        TA.free(a, d)
        cond_end(lab)
    S4 = {}
    def ev_S4i():
        a = TA.need(1); d = TA.need(1); t = TA.need(1)
        I('v_and_b32', a, 3, vl); I('v_lshlrev_b32', a, 2, a); I('v_bfe_u32', t, vl, 2, 1); I('v_lshl_add_u32', a, t, 7, a)
        TA.free(t)
        S4.update(a=a, d=d, op=I('buffer_load_dword', d, a, sDBG, 0, mods='offen sc1'))
    def ev_S4c():
        e.comment('S4: startup barrier check')
        a, d = S4['a'], S4['d']; t = TA.need(1)
        e.wait_vm(S4['op'])
        lc = e.newlabel('Lc'); lo = e.newlabel('Lo')
        e.label(lc)
        I('v_and_b32', t, 0xff, d); I('v_cmp_ne_u32', 'vcc', 32, t)
        e.branch('s_cbranch_vccz', lo)
        I('s_cmp_eq_u32', sTO, 0); e.branch('s_cbranch_scc1', lo)
        I('s_sub_u32', sTO, sTO, 1); I('s_sleep', 8)
        e.push_scope(); I('buffer_load_dword', d, a, sDBG, 0, mods='offen sc1'); e.wait_vm0(); e.pop_scope()
        e.branch('s_branch', lc, back=True)
        e.label(lo)
        e.nop(4)
        I('v_readlane_b32', sT0, d, sJ)
        I('s_mul_i32', sT1, sXCC, sXCC); I('s_lshl_b32', sT1, sT1, 16); I('s_lshl_b32', sLOC, sXCC, 8); I('s_add_u32', sT1, sT1, sLOC); I('s_add_u32', sT1, sT1, 1)
        I('s_lshl_b32', sT1, sT1, 5)
        I('s_cmp_eq_u32', sT0, sT1); I('s_cselect_b32', sLOC, 1, 0)
        TA.free(a, d, t, vl)
        stamp('S4')

    P = {}
    def ev_gq(layer, b):
        q = TA.need(4)
        g = Gather([('buffer_load_dwordx4', q, vQo, sQld, (WS_Q1 if layer == 0 else WS_Q2) + b * 8192)])
        g.issue(); P[(layer, b)] = dict(q=q, g=g)
    def operand_stream(ps):
        pend = {}; LA = 3
        def pf(k):
            if k < len(ps) and isinstance(slots[ps[k]], tuple):
                t = TA.need(4, True); pend[k] = (t, I('ds_read_b128', t, vRing, mods=f'offset:{slots[ps[k]][1]*1024}'))
        for k in range(LA): pf(k)
        for k in range(len(ps)):
            pf(k + LA)
            if k in pend:
                t, o = pend.pop(k); e.wait_lg(o); yield t; TA.free(t)
            else: yield slots[ps[k]]
    def ev_QK(layer, b):
        e.comment(f'QK layer{layer} b{b}')
        st = P[(layer, b)]; q = st['q']
        if layer == 0: e.wait_vm(st['g'].last)
        else: st['g'].check()
        e.wait_vm(kvop[32 * b + 15])
        Sx = TA.need(16); Db = [TA.need(4) for _ in range(3)]
        def red(t):
            d = Db[t % 3]
            I('v_mov_b32_dpp', Sx[t], d[0], mods=f'quad_perm:[0,0,0,0] {DPPM}')
            for r in (1, 2, 3): I('v_add_f32_dpp', Sx[t], d[r], Sx[t], mods=f'quad_perm:[{r},{r},{r},{r}] {DPPM}')
        for t, a in enumerate(operand_stream([32 * b + t for t in range(16)])):
            I('v_mfma_f32_16x16x32_bf16', Db[t % 3], a, q, 0)
            if t >= 2: red(t - 2)
        red(14); red(15)
        if layer == 1:
            for t in range(16): kv_free(32 * b + t)
        TA.free(q, *Db)
        ml = TA.need(2); m = ml[0]; l = ml[1]
        I('v_max3_f32', m, Sx[0], Sx[1], Sx[2])
        for t in range(3, 15, 2): I('v_max3_f32', m, m, Sx[t], Sx[t+1])
        I('v_max_f32', m, m, Sx[15])
        gred('v_max_f32', m)
        I('v_mul_f32', m, sC, m)
        pp = TA.need(8)
        for t in range(16): I('v_fma_f32', Sx[t], Sx[t], sC, Neg(m))
        for t in range(16): I('v_exp_f32', Sx[t], Sx[t])
        for t in range(0, 16, 2): I('v_cvt_pk_bf16_f32', pp[t // 2], Sx[t], Sx[t+1])
        for t in range(8): I('v_add_f32', Sx[t], Sx[t], Sx[t+8])
        for t in range(4): I('v_add_f32', Sx[t], Sx[t], Sx[t+4])
        I('v_add_f32', Sx[0], Sx[0], Sx[2]); I('v_add_f32', Sx[1], Sx[1], Sx[3]); I('v_add_f32', l, Sx[0], Sx[1])
        gred('v_add_f32', l)
        TA.free(Sx)
        st.update(ml=ml, pp=pp, O=TA.need(8))
    def ev_PV(layer, b, tiles):
        e.comment(f'PV layer{layer} b{b} {tiles}')
        st = P[(layer, b)]; pp = st['pp']; O = st['O']
        e.wait_vm(kvop[32 * b + 16 + tiles[-1]])
        X = [TA.need(2), TA.need(2)]
        def mk(t):
            x = X[t % 2]
            I('v_perm_b32', x[0], pp[t // 2], pp[t // 2], vSel[t % 2]); I('v_perm_b32', x[1], pp[t // 2], pp[t // 2], vSel[2 + t % 2])
        mk(tiles[0])
        for k, a in enumerate(operand_stream([32 * b + 16 + t for t in tiles])):
            t = tiles[k]
            if k + 1 < len(tiles): mk(tiles[k + 1])
            I('v_mfma_f32_16x16x16_bf16', O[0:4], a[0:2], X[t % 2], O[0:4] if t else 0)
            I('v_mfma_f32_16x16x16_bf16', O[4:8], a[2:4], X[t % 2], O[4:8] if t else 0)
        if layer == 1:
            for t in tiles: kv_free(32 * b + 16 + t)
        TA.free(*X)
    def ev_CMB(layer, b):
        e.comment(f'CMB layer{layer} b{b}')
        st = P.pop((layer, b)); O = st['O']; ml = st['ml']
        ex = next_ex()
        I('ds_write_b64', vSW, ml, mods=f'offset:{ex}')
        I('ds_write_b128', vOW, O[0:4], mods=f'offset:{ex}'); I('ds_write_b128', vOW, O[4:8], mods=f'offset:{ex+1024}')
        barrier()
        so = I('ds_read_b64', ml, vSR, mods=f'offset:{ex}')
        I('ds_read_b128', O[0:4], vOR, mods=f'offset:{ex}'); oo = I('ds_read_b128', O[4:8], vOR, mods=f'offset:{ex+1024}')
        M = TA.need(1); f = TA.need(1); L = TA.need(1)
        e.wait_lg(so)
        I('v_max_f32_dpp', M, ml[0], ml[0], mods=f'quad_perm:[1,0,3,2] {DPPM}')
        I('v_max_f32_dpp', M, M, M, mods=f'quad_perm:[2,3,0,1] {DPPM}')
        I('v_sub_f32', f, ml[0], M); I('v_exp_f32', f, f); I('v_mul_f32', L, f, ml[1])
        I('v_add_f32_dpp', L, L, L, mods=f'quad_perm:[1,0,3,2] {DPPM}')
        I('v_add_f32_dpp', L, L, L, mods=f'quad_perm:[2,3,0,1] {DPPM}')
        I('v_rcp_f32', ml[0], L); I('v_log_f32', L, L); I('v_mul_f32', f, f, ml[0]); I('v_add_f32', M, M, L)
        e.wait_lg(oo)
        for r in range(8): I('v_mul_f32', O[r], O[r], f)
        for r in range(8): I('v_add_f32_dpp', O[r], O[r], O[r], mods=f'quad_perm:[1,0,3,2] {DPPM}')
        for r in range(8): I('v_add_f32_dpp', O[r], O[r], O[r], mods=f'quad_perm:[2,3,0,1] {DPPM}')
        pk = st['pp'][0:4]
        for r in range(4): I('v_cvt_pk_bf16_f32', pk[r], O[2*r], O[2*r+1])
        idx = (layer * 8 + b) * 8
        I('s_mov_b32', sT0, WS_H1 + idx * 32768); I('s_add_u32', sT1, sLSEst, idx * 512)
        set_exec(0x11111111, 0x11111111)
        store2('buffer_store_dwordx4', pk, vH1st, sT0)
        set_exec(1, 0)
        store2('buffer_store_dword', M, vL16, sT1)
        full_exec()
        TA.free(O, ml, st['pp'], M, f, L)
        stamp(f'CMB{layer}{b}')

    G = {}
    def publish_state(stq, stage, b, drain):
        H = TA.need(4); t = TA.need(4)
        I('v_cvt_pk_bf16_f32', H[0], stq[0], stq[1]); I('v_cvt_pk_bf16_f32', H[1], stq[2], stq[3])
        I('v_lshlrev_b32', t[0], 16, H[0]); I('v_and_b32', t[1], -65536, H[0]); I('v_lshlrev_b32', t[2], 16, H[1]); I('v_and_b32', t[3], -65536, H[1])
        for r in range(4): I('v_sub_f32', t[r], stq[r], t[r])
        I('v_cvt_pk_bf16_f32', H[2], t[0], t[1]); I('v_cvt_pk_bf16_f32', H[3], t[2], t[3])
        I('v_permlane16_swap_b32', H[0], H[2]); I('v_permlane16_swap_b32', H[1], H[3])
        I('s_mov_b32', sT0, WS_X + (stage * 8 + b) * 16384)
        set_exec(0x00010001, 0x00010001)
        I('buffer_store_dwordx4', H, vXst, sWS, sT0, mods='offen sc1')
        full_exec()
        if drain: e.wait_vm0()
        TA.free(H, t)
    def ev_gWo(layer, b):
        Aa = TA.need(32); ls = TA.need(8); idx = (layer * 8 + b) * 8
        loads = [('buffer_load_dwordx4', ls[4*mt:4*mt+4], vG16, sLSEld, idx * 512 + 64 * mt) for mt in range(2)]
        loads += [('buffer_load_dwordx4', Aa[4*k:4*k+4], vL16, sH1ld, WS_H1 + idx * 32768 + 1024 * k) for k in range(8)]
        g = Gather(loads); g.issue(); G[('Wo', layer, b)] = (g, Aa, ls)
    def ev_Wo(layer, b, drain):
        e.comment(f'Wo layer{layer} b{b}')
        g, Aa, ls = G.pop(('Wo', layer, b))
        B = TA.need(16, True)
        for kk in range(4): lastb = trfrag(B[4*kk:4*kk+4], vTrO, kk * 1024)
        g.check()
        e.wait_lg(lastb)
        Dm = [TA.need(4), TA.need(4)]
        M = TA.need(1); W = TA.need(1); y = TA.need(1)
        for kk in range(4):
            for mt in range(2): I('v_mfma_f32_16x16x32_bf16', Dm[mt], Aa[16*mt+4*kk:16*mt+4*kk+4], B[4*kk:4*kk+4], Dm[mt] if kk else 0)
        I('v_max3_f32', M, ls[0], ls[1], ls[2]); I('v_max3_f32', M, M, ls[3], ls[4]); I('v_max3_f32', M, M, ls[5], ls[6]); I('v_max_f32', M, M, ls[7])
        gred('v_max_f32', M)
        for r in range(8): I('v_sub_f32', ls[r], ls[r], M)
        for r in range(8): I('v_exp_f32', ls[r], ls[r])
        I('v_add_f32', W, ls[0], ls[1])
        for r in range(2, 8): I('v_add_f32', W, W, ls[r])
        gred('v_add_f32', W)
        I('v_rcp_f32', W, W)
        I('v_mul_f32', y, ls[0], Dm[0][0])
        for r in range(1, 8): I('v_fmac_f32', y, ls[r], Dm[r // 4][r % 4])
        I('v_mul_f32', y, y, W)
        ex = next_ex()
        I('ds_write_b32', vExA, y, mods=f'offset:{ex}')
        barrier()
        TA.free(Aa, ls, B, *Dm); TA.free(M, W, y)
        lab = cond_wave(b % 4)
        R = TA.need(4)
        o = I('ds_read_b128', R, vExR, mods=f'offset:{ex}'); e.wait_lg(o)
        I('v_add_f32', R[0], R[0], R[1]); I('v_add_f32', R[2], R[2], R[3]); I('v_add_f32', R[0], R[0], R[2])
        stq = ST[b // 4]
        I('v_mfma_f32_16x16x4_f32', stq, R[0], vOneF, stq)
        TA.free(R)
        publish_state(stq, 2 * layer, b, drain)
        cond_end(lab)
        if drain: I('s_barrier'); I('s_sleep', 4)
        stamp(f'Wo{layer}{b}')
    def role_begin():
        lab = e.newlabel('Lr'); I('s_cmp_lt_u32', sI_, 14); e.branch('s_cbranch_scc0', lab); e.push_scope(); return lab
    def ev_gL(kind, layer, b):
        stage = 2 * layer + (0 if kind == '1' else 1)
        Aa = TA.need(16)
        g = Gather([('buffer_load_dwordx4', Aa[4*k:4*k+4], vL16, sXld, (stage * 8 + b) * 16384 + 1024 * k) for k in range(4)])
        if kind == '1': lab = role_begin()
        g.issue()
        if kind == '1': cond_end(lab)
        G[(kind, layer, b)] = (g, Aa)
    def ev_L(kind, layer, b):
        e.comment(f'L{kind} layer{layer} b{b}')
        g, Aa = G.pop((kind, layer, b))
        if kind == '1':
            rl = role_begin(); exlcnt[0] += 1; ex = L_EXL - L_EX + (exlcnt[0] & 1) * 2048
        else: ex = next_ex()
        B = TA.need(16, True)
        for kk in range(4): lastb = trfrag(B[4*kk:4*kk+4], vTrS, (L_W1 if kind == '1' else L_WQ) + kk * 1024)
        g.check()
        DG = TA.need(4); D1 = TA.need(4); DW = TA.need(4)
        for kk in range(4): I('v_mfma_f32_16x16x32_bf16', DG, Aa[4*kk:4*kk+4], Aa[4*kk:4*kk+4], DG if kk else 0)
        for kk in range(4): I('v_mfma_f32_16x16x32_bf16', D1, Aa[4*kk:4*kk+4], vOnes, D1 if kk else 0)
        e.wait_lg(lastb)
        for kk in range(4): I('v_mfma_f32_16x16x32_bf16', DW, Aa[4*kk:4*kk+4], B[4*kk:4*kk+4], DW if kk else 0)
        def sum4(Dx):
            I('v_add_f32', Dx[0], Dx[0], Dx[1]); I('v_add_f32', Dx[2], Dx[2], Dx[3]); I('v_add_f32', Dx[0], Dx[0], Dx[2])
        sum4(DG); rowsum(DG[0]); sum4(D1)
        I('s_mov_b32', sM[0], 0xaaaaaaaa); I('s_mov_b32', sM[1], 0xaaaaaaaa)
        I('v_cndmask_b32', D1[0], D1[0], DG[0], sM)
        I('ds_write_b32', vExA, D1[0], mods=f'offset:{ex+1024}')
        sum4(DW)
        I('ds_write_b32', vExA, DW[0], mods=f'offset:{ex}')
        barrier()
        TA.free(Aa, B, DG, D1, DW)
        lab = cond_wave((b + 2) % 4)
        R = TA.need(4); Z = TA.need(4)
        oz = I('ds_read_b128', Z, vExR, mods=f'offset:{ex+1024}'); o = I('ds_read_b128', R, vExR, mods=f'offset:{ex}')
        e.wait_lg(oz); sum4(Z)
        zt = TA.need(4); yt = TA.need(4)
        I('v_mfma_f32_16x16x4_f32', zt, Z[0], vOneF, 0)
        e.wait_lg(o); sum4(R)
        I('v_mfma_f32_16x16x4_f32', yt, vOneF, R[0], 0)
        y = yt[0]
        post_ln(y, zt, cs1 if kind == '1' else csq)
        if kind == '1':
            t = yt[1]
            I('v_mul_f32', t, f2u(-math.log2(math.e)), y); I('v_exp_f32', t, t); I('v_add_f32', t, '1.0', t); I('v_rcp_f32', t, t); I('v_mul_f32', y, y, t)
        pack_pairs(y)
        if kind == '1': I('s_add_u32', sT0, sHHst, (layer * 8 + b) * 4096)
        else: I('s_add_u32', sT0, sQst, WS_Q2 + b * 8192)
        set_exec(0x5555, 0)
        store2('buffer_store_dword', y, vN2, sT0)
        full_exec()
        TA.free(R, Z, zt, yt)
        cond_end(lab)
        if kind == '1': cond_end(rl)
        stamp(f'L{kind}{layer}{b}')
    def ev_gW2(layer, b, drain):
        lab = cond_wave(b % 4)
        if drain:
            Hh = TA.need(28); va = None
            g = Gather([('buffer_load_dwordx4', Hh[4*k:4*k+4], vG16, sHHld, (layer * 8 + b) * 4096 + 64 * k) for k in range(7)])
        else:
            Hh = TA.need(4); va = TA.need(1)
            I('v_min_u32', va, 432, vL16)
            g = Gather([('buffer_load_dwordx4', Hh, va, sHHld, (layer * 8 + b) * 4096)])
        g.issue(); cond_end(lab)
        G[('W2', layer, b)] = (g, Hh, va)
    def ev_W2(layer, b, drain):
        e.comment(f'W2 layer{layer} b{b}')
        g, Hh, va = G.pop(('W2', layer, b))
        lab = cond_wave(b % 4)
        stq = ST[b // 4]
        if va is None:
            Wf = TA.need(28, True)
            for kk in range(7): lastb = trfrag(Wf[4*kk:4*kk+4], vTr0, L_W2 + kk * 1024)
            g.check(); e.wait_lg(lastb)
            for kk in range(7): I('v_mfma_f32_16x16x32_bf16', stq, Wf[4*kk:4*kk+4], Hh[4*kk:4*kk+4], stq)
            TA.free(Wf, Hh)
        else:
            g.check()
            scr = L_SCR + (b % 4) * 512
            I('v_add_u32', va, scr, va)
            o = I('ds_write_b128', va, Hh)
            I('v_add_u32', va, scr, vG16)
            NW = 3
            Wf = TA.need(4 * NW, True); Hf = TA.need(4 * NW, True); fo = {}
            def ld(kk):
                q = 4 * (kk % NW)
                trfrag(Wf[q:q+4], vTr0, L_W2 + kk * 1024)
                fo[kk] = I('ds_read_b128', Hf[q:q+4], va, mods=f'offset:{64*kk}')
            for kk in range(NW): ld(kk)
            for kk in range(7):
                e.wait_lg(fo[kk]); q = 4 * (kk % NW)
                I('v_mfma_f32_16x16x32_bf16', stq, Wf[q:q+4], Hf[q:q+4], stq)
                if kk + NW < 7: ld(kk + NW)
            TA.free(Wf, Hf, Hh, va)
        publish_state(stq, 2 * layer + 1, b, drain)
        cond_end(lab)
        if drain: I('s_barrier'); I('s_sleep', 4)
        stamp(f'W2{layer}{b}')
    def fin_begin(b):
        lab = e.newlabel('Lf')
        I('s_lshl_b32', sT0, sJ, 2); I('s_add_u32', sT0, sT0, sW); I('s_cmp_eq_u32', sT0, 4 * b + (b + 1) % 4)
        e.branch('s_cbranch_scc0', lab); e.push_scope(); return lab
    def ev_gF(b):
        Aa = TA.need(4)
        g = Gather([('buffer_load_dwordx4', Aa, vL16, sFld, b * 16384)])
        lab = fin_begin(b); g.issue(); cond_end(lab)
        G[('F', b)] = (g, Aa)
    def ev_F(b):
        e.comment(f'Final b{b}')
        g, Aa = G.pop(('F', b))
        lab = fin_begin(b)
        Sel = TA.need(4); t = TA.need(1); u = TA.need(1)
        I('s_and_b32', sT0, sI_, 1); I('s_lshl_b32', sT0, sT0, 4)
        I('v_lshlrev_b32', t, 3, vg); I('v_sub_u32', t, vn, t); I('v_add_u32', t, sT0, t)
        for r in range(4):
            I('v_mov_b32', u, 0x3f80); I('v_cmp_eq_u32', 'vcc', 2 * r, t); I('v_cndmask_b32', Sel[r], 0, u, 'vcc')
            I('v_mov_b32', u, 0x3f800000); I('v_cmp_eq_u32', 'vcc', 2 * r + 1, t); I('v_cndmask_b32', Sel[r], Sel[r], u, 'vcc')
        g.check()
        Dx = TA.need(4); yt = TA.need(4)
        I('v_mfma_f32_16x16x32_bf16', Dx, Aa, Sel, 0)
        I('v_add_f32', Dx[0], Dx[0], Dx[1]); I('v_add_f32', Dx[2], Dx[2], Dx[3]); I('v_add_f32', Dx[0], Dx[0], Dx[2])
        I('v_mfma_f32_16x16x4_f32', yt, vOneF, Dx[0], 0)
        pack_pairs(yt[0])
        I('s_lshl_b32', sT0, sI_, 5); I('s_add_u32', sT0, sT0, b * 1024)
        set_exec(0x5555, 0)
        I('buffer_store_dword', yt[0], vN2, sOUT, sT0, mods='offen')
        full_exec()
        TA.free(Aa, Sel, t, u, Dx, yt)
        cond_end(lab)
        stamp(f'F{b}')

    ev = []
    def at(pos, fn, late=0): ev.append((pos, len(ev) + 100000 * late, fn))
    at(1, ev_S2); at(1 + D, ev_S3); at(cfg.pS4, ev_S4i); at(cfg.pS4 + D, ev_S4c)
    DR = 256
    for b in range(8):
        P0 = 32 * b
        pq = max(P0 + 16 - D, cfg.pS4 + D)
        at(pq, lambda b=b: ev_gq(0, b), 1)
        pk = pq + D
        at(pk, lambda b=b: ev_QK(0, b))
        for c in range(4): at(max(P0 + 20 + 4 * c, pk), lambda b=b, c=c: ev_PV(0, b, list(range(4 * c, 4 * c + 4))))
        p = max(P0 + 32, pk)
        at(p, lambda b=b: ev_CMB(0, b))
        for layer in range(2):
            p += cfg.o_gWo if layer == 0 else cfg.o_gWo2
            at(p, lambda b=b, l=layer: ev_gWo(l, b), 1); p += D
            at(p, lambda b=b, l=layer, p=p: ev_Wo(l, b, p >= DR)); p += cfg.o_gL1
            at(p, lambda b=b, l=layer: ev_gL('1', l, b), 1); p += D
            at(p, lambda b=b, l=layer: ev_L('1', l, b)); p += cfg.o_gW2
            at(p, lambda b=b, l=layer, p=p: ev_gW2(l, b, p >= DR), 1); p += D
            at(p, lambda b=b, l=layer, p=p: ev_W2(l, b, p >= DR))
            if layer == 0:
                p += cfg.o_gLq
                at(p, lambda b=b: ev_gL('q', 0, b), 1); p += D
                at(p, lambda b=b: ev_L('q', 0, b)); p += cfg.o_gq2
                at(p, lambda b=b: ev_gq(1, b), 1); p += D
                at(p, lambda b=b: ev_QK(1, b)); at(p, lambda b=b: ev_PV(1, b, list(range(16)))); at(p, lambda b=b: ev_CMB(1, b))
            else:
                p += cfg.o_gF
                at(p, lambda b=b: ev_gF(b), 1); p += D
                at(p, lambda b=b: ev_F(b))
    ev.sort(key=lambda x: (x[0], x[1]))
    k = 0; maxpos = ev[-1][0]
    for pos in range(1, maxpos + 1):
        if pos - 1 < 256: e.wait_vm(kvop[pos - 1])
        while k < len(ev) and ev[k][0] == pos:
            mx0 = TA0.maxused = len(TA.used)
            nl = len(e.lines)
            ev[k][2](); k += 1
            if cfg.verbose: print(pos, 'live before', mx0, 'peak', TA0.maxused, 'after', len(TA.used), 'ring', len(slots), [l for l in e.lines[nl:nl+1]])
        if issued[0] < 256:
            kv_issue(issued[0]); issued[0] += 1
    e.label('L_end')
    e.raw('  s_endpgm')
    e.raw('L_codeend:')
    info = dict(peakT=TA.peak, ninstr=e.ninstr, stamps=stamp_names, leftover=len(TA.used))
    hdr = open('cdna_kernels/' + NAME + '.s.ref').read().split('; Override launch')[0]
    head = hdr + f'; @launch grid=(256,1,1) block=(256,1,1) lds={LDS_TOTAL}\n' + f'''.amdgcn_target "amdgcn-amd-amdhsa--gfx950"
.text
.globl {NAME}_kernel
.p2align 8
.type {NAME}_kernel,@function
{NAME}_kernel:
'''
    tail = f'''
.section .rodata,"a"
.p2align 6
.amdhsa_kernel {NAME}_kernel
  .amdhsa_next_free_vgpr 512
  .amdhsa_next_free_sgpr 102
  .amdhsa_accum_offset 256
  .amdhsa_group_segment_fixed_size 0
  .amdhsa_kernarg_size 88
  .amdhsa_user_sgpr_count 2
  .amdhsa_user_sgpr_kernarg_segment_ptr 1
  .amdhsa_system_sgpr_workgroup_id_x 1
.end_amdhsa_kernel
'''
    return head + '\n'.join(e.lines) + tail, info

if __name__ == '__main__':
    cfg = Cfg(); cfg.pS4 = 18; cfg.nstamps = 96
    out = 'k.s'
    for a in sys.argv[1:]:
        if '=' in a:
            k_, v_ = a.split('=');
            if k_ == 'out': out = v_
            else: setattr(cfg, k_, int(v_))
    txt, info = gen(cfg)
    open(out, 'w').write(txt)
    print(out, {k: v for k, v in info.items() if k != 'stamps'}, len(info['stamps']), len(txt))
    open(out + '.stamps', 'w').write('\n'.join(info['stamps']))
```
